```python
import torch

def _softmax(x, axis=-1):
    return torch.softmax(x, dim=axis)
def _gelu(x):
    return torch.nn.functional.gelu(x, approximate="tanh")
def _silu(x):
    return torch.nn.functional.silu(x)
def _sigmoid(x):
    return torch.sigmoid(x)
def _layernorm(x, axis=-1, eps=1e-5):
    m = x.mean(dim=axis, keepdim=True)
    v = x.var(dim=axis, keepdim=True, unbiased=False)
    return (x - m) / torch.sqrt(v + eps)
def _scatter_add(tgt, idx, src, axis=0):
    return tgt.clone().index_add_(axis, idx, src)
def _segment_sum(src, seg, n):
    out = torch.zeros((n,) + src.shape[1:], dtype=src.dtype)
    return out.index_add_(0, seg, src)
def _pad(x, pw):
    flat = tuple(v for pair in reversed(pw) for v in pair)
    return torch.nn.functional.pad(x, flat)

kernel_name = 'sequential_preLN__linear_attn_block__dense_activation_gelu__prompt'

def setup_inputs():

    _w = (lambda a: (lambda t: t.to(torch.bfloat16) if t.is_floating_point() else t)(torch.as_tensor(a)))
    def _A_setup():
        B, S, D = 1, 2048, 640
        return {
            "x": _w((lambda *s: torch.randn(*s, dtype=torch.bfloat16) * 0.05)(B, S, D)),
            "wqkv": _w((lambda *s: torch.randn(*s, dtype=torch.bfloat16) * 0.05)(D, 3 * D)),
            "wo": _w((lambda *s: torch.randn(*s, dtype=torch.bfloat16) * 0.05)(D, D)),
        }
    _A_in = _A_setup()

    def _B_setup():
        B, S, D, F = 1, 2048, 640, 1536
        return {
            "x": _w((lambda *s: torch.randn(*s, dtype=torch.bfloat16) * 0.05)(B, S, D)),
            "w1": _w((lambda *s: torch.randn(*s, dtype=torch.bfloat16) * 0.8)(D, F) * (D ** -0.5)),
            "b1": _w((lambda *s: torch.randn(*s, dtype=torch.bfloat16) * 12.8)(F) * 0.01),
            "w2": _w((lambda *s: torch.randn(*s, dtype=torch.bfloat16) * 0.2)(F, D) * (F ** -0.5)),
            "b2": _w((lambda *s: torch.randn(*s, dtype=torch.bfloat16) * 3.2)(D) * 0.01),
        }
    _B_in = _B_setup()

    return {
        "A_x": _A_in["x"],
        "A_wqkv": _A_in["wqkv"],
        "A_wo": _A_in["wo"],
        "B_x": _B_in["x"],
        "B_w1": _B_in["w1"],
        "B_b1": _B_in["b1"],
        "B_w2": _B_in["w2"],
        "B_b2": _B_in["b2"],
    }

def reference(A_x, A_wqkv, A_wo, B_x, B_w1, B_b1, B_w2, B_b2):
    def _A_ref(x, wqkv, wo):
        B, S, D = x.shape
        H = 32; Dh = D // H
        qkv = (lambda x, *d: x.permute(*d))((x @ wqkv).reshape(B, S, 3, H, Dh), 2, 0, 3, 1, 4)
        q, k, v = qkv[0], qkv[1], qkv[2]
        phi = lambda t: torch.where(t > 0, t + 1, torch.exp(t)) + 1e-6
        pq, pk = phi(q), phi(k)
        kv = torch.einsum("bhsd,bhse->bhde", pk, v)
        z = torch.einsum("bhsd->bhd", pk)
        num = torch.einsum("bhqd,bhde->bhqe", pq, kv)
        den = torch.einsum("bhqd,bhd->bhq", pq, z)[..., None] + 1e-6
        o = num / den
        return (lambda x, *d: x.permute(*d))(o, 0, 2, 1, 3).reshape(B, S, D) @ wo

    def _B_ref(x, w1, b1, w2, b2):
        h = torch.einsum("bsd,df->bsf", x, w1) + b1
        h = _gelu(h)
        return torch.einsum("bsf,fd->bsd", h, w2) + b2

    x = A_x
    h = x + _A_ref(_layernorm(x, axis=-1), A_wqkv, A_wo)
    h2 = h + _B_ref(_layernorm(h, axis=-1), B_w1, B_b1, B_w2, B_b2)
    return h2
```

```python
import re

def v(a, n=1):
    return f"v{a}" if n == 1 else f"v[{a}:{a+n-1}]"
def s(a, n=1):
    return f"s{a}" if n == 1 else f"s[{a}:{a+n-1}]"

class Asm:
    def __init__(self):
        self.lines = []
    def __call__(self, text):
        for ln in text.split("\n"):
            ln = ln.strip()
            if ln:
                self.lines.append(ln)
    def label(self, name):
        self.lines.append(name + ":")
    def c(self, text):
        self.lines.append("; " + text)
    def text(self):
        out = []
        for ln in self.lines:
            if ln.endswith(":") or ln.startswith(";") or ln.startswith("."):
                out.append(ln)
            else:
                out.append("    " + ln)
        return "\n".join(out) + "\n"

class Regs:
    def __init__(self, start, limit):
        self.p = start; self.limit = limit; self.names = {}; self.hi = start
    def alloc(self, name, n=1, align=1):
        if n >= 2 and align == 1: align = 2
        self.p = (self.p + align - 1)//align*align
        r = self.p; self.p += n
        assert self.p <= self.limit, f"out of regs at {name}: {self.p}"
        self.hi = max(self.hi, self.p)
        self.names[name] = (r, n)
        return r
    def mark(self): return self.p
    def reset(self, m): self.p = m

REG = re.compile(r"\b([vsa])\[(\d+):(\d+)\]|\b([vsa])(\d+)\b|\b(vcc_lo|vcc_hi|vcc|exec_lo|exec_hi|exec|m0|scc)\b")
def regs_of(op):
    out = []
    for m in REG.finditer(op):
        if m.group(1):
            out += [(m.group(1), i) for i in range(int(m.group(2)), int(m.group(3))+1)]
        elif m.group(4):
            out.append((m.group(4), int(m.group(5))))
        else:
            n = m.group(6)
            if n.startswith("vcc"): out.append(("vcc", 0))
            elif n.startswith("exec"): out.append(("exec", 0))
            else: out.append((n, 0))
    return out

TRANS = ("v_exp_f32", "v_log_f32", "v_rcp_f32", "v_rsq_f32", "v_sqrt_f32", "v_sin_f32", "v_cos_f32")

class Ins:
    def __init__(self, text):
        self.text = text
        t = text.split(";")[0].strip()
        parts = t.split(None, 1)
        self.op = parts[0]
        rest = parts[1] if len(parts) > 1 else ""
        ops = [o.strip() for o in re.split(r",(?![^\[]*\])", rest)] if rest else []
        self.ops = ops
        op = self.op
        base = re.sub(r"_e(32|64)$", "", op)
        self.base = base
        self.kind = "other"
        self.w = []; self.r = []
        self.nstates = 1
        if op == "s_nop":
            self.kind = "nop"; self.nstates = int(ops[0], 0) + 1
        elif op.startswith("v_mfma"):
            self.kind = "mfma"
            self.w = regs_of(ops[0]); self.srcA = regs_of(ops[1]); self.srcB = regs_of(ops[2]); self.srcC = regs_of(ops[3])
            self.r = self.srcA + self.srcB + self.srcC
            self.passes = 8 if "32x32" in op else 4
        elif op.startswith("v_cmp"):
            self.kind = "valu"
            self.w = regs_of(ops[0]); self.r = [x for o in ops[1:] for x in regs_of(o)]
            if op.startswith("v_cmpx"): self.w += [("exec", 0)]
        elif op.startswith("v_readfirstlane") or op.startswith("v_readlane"):
            self.kind = "valu"; self.rl = True
            self.w = regs_of(ops[0]); self.r = [x for o in ops[1:] for x in regs_of(o)]
        elif op.startswith("v_"):
            self.kind = "valu"
            self.w = regs_of(ops[0]); k = 1
            if base in ("v_add_co_u32", "v_addc_co_u32", "v_sub_co_u32", "v_subb_co_u32", "v_div_scale_f32"):
                self.w += regs_of(ops[1]); k = 2
            self.r = [x for o in ops[k:] for x in regs_of(o)]
            if base in ("v_fmac_f32", "v_pk_fmac_f16", "v_dot2c_f32_bf16"): self.r += self.w
            if base == "v_cndmask_b32" and len(ops) == 3: self.r.append(("vcc", 0))
            if base.startswith("v_permlane") and "swap" in base:
                self.w += regs_of(ops[1]); self.r += regs_of(ops[0])
            if base in ("v_nop",): self.w = []; self.r = []
        elif op.startswith("ds_"):
            self.kind = "ds"
            if op.startswith("ds_read") or op.startswith("ds_bpermute") or op.startswith("ds_swizzle") or op.startswith("ds_permute"):
                self.w = regs_of(ops[0]); self.r = [x for o in ops[1:] for x in regs_of(o)]
            else:
                self.r = [x for o in ops for x in regs_of(o)]
        elif op.startswith("buffer_") or op.startswith("global_"):
            self.kind = "vmem"
            is_lds = re.search(r"\blds\b", rest) is not None
            self.is_lds = is_lds
            if "load" in op and not is_lds:
                self.w = regs_of(ops[0]); self.r = [x for o in ops[1:] for x in regs_of(o)]
            elif "store" in op or "atomic" in op:
                self.r = [x for o in ops for x in regs_of(o)]
                self.store_data = regs_of(ops[0]) if op.startswith("buffer_") else regs_of(ops[1])
                self.wide = ("x4" in op or "x3" in op)
            else:
                self.r = [x for o in ops for x in regs_of(o)]
                if is_lds: self.r.append(("m0", 0))
        elif op.startswith("s_"):
            self.kind = "salu"
            nodst = ("s_cmp", "s_cbranch", "s_branch", "s_waitcnt", "s_barrier", "s_endpgm", "s_sleep", "s_setprio", "s_bitcmp")
            if any(op.startswith(x) for x in nodst):
                self.r = [x for o in ops for x in regs_of(o)]
            else:
                self.w = regs_of(ops[0]) if ops else []
                self.r = [x for o in ops[1:] for x in regs_of(o)]
                if "saveexec" in op: self.w.append(("exec", 0))
            if op.startswith("s_load") or op.startswith("s_memtime") or op.startswith("s_memrealtime"): self.kind = "smem"

def check_hazards(lines, verbose=True):
    ins = []; labels = {}
    for ln in lines:
        t = ln.split(";")[0].strip()
        if not t or t.startswith("."): continue
        if t.endswith(":"):
            labels[t[:-1]] = len(ins); continue
        ins.append(Ins(t))
    problems = []
    def scan(seq):
        hist = []
        pos = 0
        for idx in seq:
            I = ins[idx]
            R = set(I.r); W = set(I.w)
            Rv = {x for x in R if x[0] in "va"}; Wv = {x for x in W if x[0] in "va"}
            for (P, ppos) in reversed(hist):
                d = pos - ppos - P.nstates
                if d >= 20: break
                PW = set(P.w)
                need = 0; why = ""
                def req(n, w):
                    nonlocal need, why
                    if n > need: need, why = n, w
                if P.kind == "valu":
                    pwv = {x for x in PW if x[0] in "va"}
                    pws = {x for x in PW if x[0] in ("s", "vcc")}
                    if I.kind == "mfma" and pwv & R: req(2, "VALU->MFMA operand")
                    if I.kind == "valu" and getattr(I, "rl", False) and pwv & R: req(1, "VALU->readlane")
                    if I.kind == "valu" and I.base.startswith("v_permlane") and pwv & R: req(2, "VALU->permlane")
                    if I.kind == "valu" and "dpp" in I.text or (I.kind == "valu" and ("row_" in I.text or "quad_perm" in I.text)):
                        if pwv & R: req(2, "VALU->DPP")
                    if P.base in TRANS and I.kind == "valu" and I.base not in TRANS and pwv & R: req(1, "trans->VALU")
                    if P.base in TRANS and I.kind in ("valu",) and pwv & R: req(1, "trans->VALU")
                    if I.kind == "vmem" and pws & R: req(5, "VALU sgpr->VMEM")
                    if I.kind == "valu" and pws & R: req(2, "VALU sgpr/vcc->VALU read")
                    if ("exec", 0) in PW and I.kind == "mfma": req(4, "VALU exec->MFMA")
                    if ("op_sel" in P.text or "sdwa" in P.text) and I.kind == "valu" and pwv & R and not P.base.startswith("v_pk_"): req(1, "opsel->VALU")
                if P.kind == "mfma":
                    n = {4: 8, 8: 12}[P.passes]
                    if I.kind == "mfma":
                        if PW & set(I.srcA + I.srcB): req(n, "MFMA D->MFMA A/B")
                        sc = set(I.srcC)
                        if PW & sc and not (sc == PW and I.passes == P.passes): req({4: 6, 8: 10}[P.passes], "MFMA D->MFMA C overlap")
                        if PW & W and not (set(I.w) == PW): req({4: 6, 8: 10}[P.passes], "MFMA D WAW partial")
                    elif I.kind in ("valu", "vmem", "ds"):
                        if PW & (R | W): req(n, "MFMA D->VALU/VMEM/DS")
                    if I.kind == "valu" and set(P.srcC) & W: req({4: 3, 8: 7}[P.passes], "MFMA C WAR")
                if P.kind == "salu" and ("m0", 0) in PW and I.kind == "vmem" and getattr(I, "is_lds", False): req(1, "m0->lds dma")
                if P.kind == "vmem" and getattr(P, "wide", False) and I.kind == "valu" and set(P.store_data) & W: req(2, "store data WAR")
                if P.kind == "vmem" and getattr(P, "wide", False) and I.kind in ("vmem", "ds") and set(P.store_data) & W: req(1, "store data WAR")
                if d < need:
                    problems.append(f"hazard {why}: need {need} have {d}\n    {P.text}\n    {I.text}")
            hist.append((I, pos))
            pos += I.nstates
            if len(hist) > 40: hist.pop(0)
    n = len(ins)
    scan(range(n))
    for k, I in enumerate(ins):
        if I.op.startswith("s_cbranch") or I.op == "s_branch":
            tgt = labels.get(I.ops[0])
            if tgt is None: continue
            pre = list(range(max(0, k - 30), k + 1))
            post = list(range(tgt, min(n, tgt + 30)))
            scan(pre + post)
    uniq = list(dict.fromkeys(problems))
    if verbose:
        for p in uniq: print(p)
    return uniq
```

```python
import sys, os
from asmlib import *

NAME = "sequential_preLN__linear_attn_block__dense_activation_gelu__prompt"
KNAME = NAME + "_kernel"

WS_EPOCH = 0
WS_F1 = 0x1000; WS_F2 = 0x2000; WS_F3 = 0x3000; WS_F4 = 0x4000; WS_F5 = 0x5000
WS_PART = 0x10000
WS_KVS = 0x290000
WS_O = 0x300000; WS_H = 0x580000; WS_H1 = 0x800000
WS_DBG = 0xE00000
WS_SIZE = 0x1000000

LDS_TOTAL = 163840
XT = 0
RING1 = 81920
MISC = 155648
ST_RSTD = MISC; ST_MR = MISC + 256
RED_SCR = MISC + 1024
WO_T = 0
A4 = 0
RING4 = 81920
RING5 = 0

SPIN_LIMIT = 40000

sWave, sI, sJ, sTag, sH, sW = 4, 5, 6, 7, 8, 9
sT0, sT1, sT2, sT3, sT4, sT5 = 10, 11, 12, 13, 14, 15
pX, pWQKV, pWO, pBX, pW1, pB1, pW2, pB2 = 16, 18, 20, 22, 24, 26, 28, 30
pOUT, pDBG, pWS = 32, 34, 36
rX, rWQKV, rWO, rW1, rW2, rWS, rOUT, rB1, rB2 = 40, 44, 48, 52, 56, 60, 64, 68, 72
sCnt, sSlot, sSpin, sT6, sT7, sT8, sT9 = 76, 77, 78, 79, 80, 81, 82
sM1, sM2, sM3, sMK, sM8 = 84, 86, 88, 90, 92
sStamp = 94

class Gen:
    def __init__(self, stamps=False):
        self.a = Asm()
        self.stamps = stamps
        self.nlab = 0
        self.nstamp = {}

    def lab(self, base):
        self.nlab += 1
        return f"L_{base}_{self.nlab}"

    def srd(self, r, p, size):
        a = self.a
        a(f"s_mov_b32 {s(r)}, {s(p)}\ns_mov_b32 {s(r+1)}, {s(p+1)}\ns_mov_b32 {s(r+2)}, {size}\ns_mov_b32 {s(r+3)}, 0x00020000")

    def stamp(self, idx, vS):
        if not self.stamps: return
        a = self.a
        a(f"s_memrealtime {s(sStamp,2)}")
        a("s_waitcnt lgkmcnt(0)")
        a(f"v_writelane_b32 {v(vS)}, {s(sStamp)}, {idx}")

    def stamp_flush(self, vS, vTmp):
        if not self.stamps: return
        a = self.a
        a(f"s_lshl_b32 {s(sT0)}, s2, 3\ns_add_u32 {s(sT0)}, {s(sT0)}, {s(sWave)}\ns_lshl_b32 {s(sT0)}, {s(sT0)}, 8\ns_add_u32 {s(sT0)}, {s(sT0)}, {WS_DBG}")
        a(f"v_lshlrev_b32 {v(vTmp)}, 2, v0")
        a(f"buffer_store_dword {v(vS)}, {v(vTmp)}, {s(rWS,4)}, {s(sT0)} offen")

    def poll(self, nflags, sOff, vTmp, vL4, sleep=1):
        a = self.a
        lp = self.lab("poll"); dn = self.lab("pdone")
        a(f"s_mov_b32 {s(sSpin)}, 0")
        if nflags == 32:
            a("s_mov_b32 exec_lo, -1\ns_mov_b32 exec_hi, 0")
        else:
            a(f"s_mov_b32 exec_lo, {hex((1 << nflags) - 1)}\ns_mov_b32 exec_hi, 0")
        a.label(lp)
        a(f"buffer_load_dword {v(vTmp)}, {v(vL4)}, {s(rWS,4)}, {s(sOff)} offen sc1")
        a("s_waitcnt vmcnt(0)")
        a(f"v_cmp_ne_u32 vcc, {s(sTag)}, {v(vTmp)}")
        a(f"s_add_u32 {s(sSpin)}, {s(sSpin)}, 1")
        a(f"s_cmp_gt_u32 {s(sSpin)}, {SPIN_LIMIT}")
        a(f"s_cbranch_scc1 {dn}")
        a("s_nop 1")
        a(f"s_cbranch_vccz {dn}")
        if sleep: a(f"s_sleep {sleep}")
        a(f"s_branch {lp}")
        a.label(dn)
        a("s_mov_b64 exec, -1")

    def flag_store(self, sOff, vTmp, vZero):
        a = self.a
        a(f"v_mov_b32 {v(vTmp)}, {s(sTag)}")
        a("s_mov_b64 exec, 1")
        a(f"buffer_store_dword {v(vTmp)}, {v(vZero)}, {s(rWS,4)}, {s(sOff)} offen sc1")
        a("s_mov_b64 exec, -1")

    def prologue(self):
        a = self.a
        a(f"s_cmp_ge_u32 s2, 256\ns_cbranch_scc1 L_exit")
        a(f"s_load_dwordx16 {s(16,16)}, s[0:1], 0")
        a(f"s_load_dwordx4 {s(32,4)}, s[0:1], 64")
        a(f"s_load_dwordx2 {s(36,2)}, s[0:1], 80")
        a(f"v_lshrrev_b32 v1, 6, v0")
        a(f"v_and_b32 v0, 63, v0")
        a(f"v_readfirstlane_b32 {s(sWave)}, v1")
        a(f"s_and_b32 {s(sI)}, s2, 7\ns_lshl_b32 {s(sI)}, {s(sI)}, 2\ns_lshr_b32 {s(sT0)}, s2, 6\ns_add_u32 {s(sI)}, {s(sI)}, {s(sT0)}")
        a(f"s_lshr_b32 {s(sJ)}, s2, 3\ns_and_b32 {s(sJ)}, {s(sJ)}, 7")
        a(f"s_and_b32 {s(sW)}, {s(sWave)}, 3")
        a(f"s_lshl_b32 {s(sH)}, {s(sJ)}, 2\ns_add_u32 {s(sH)}, {s(sH)}, {s(sW)}")
        a("s_waitcnt lgkmcnt(0)")
        a(f"s_load_dword {s(sTag)}, {s(pWS,2)}, 0")
        self.srd(rX, pX, 2621440); self.srd(rWQKV, pWQKV, 2457600); self.srd(rWS, pWS, WS_SIZE)
        a(f"s_cmp_ge_u32 {s(sWave)}, 4\ns_cbranch_scc1 L_loader")

    def tag_finish(self):
        a = self.a
        a(f"s_mul_i32 {s(sTag)}, {s(sTag)}, 0x9E3779B1\ns_add_u32 {s(sTag)}, {s(sTag)}, 0x7F4A7C15")

    def compute(self):
        a = self.a
        R = Regs(1, 256)
        vM = R.alloc("m"); vG = R.alloc("G"); vL16 = R.alloc("l16"); vL4 = R.alloc("l4"); vZero = R.alloc("zero")
        vStamp = R.alloc("stamp")
        vXres = R.alloc("xres", 10, 2)
        vT = R.alloc("tmp", 8, 4)
        ones = R.alloc("ones", 4, 4)
        base_mark = R.mark()
        a.c("==== compute waves: setup")
        a(f"v_and_b32 {v(vM)}, 15, v0\nv_lshrrev_b32 {v(vG)}, 4, v0\nv_lshlrev_b32 {v(vL16)}, 4, v0\nv_lshlrev_b32 {v(vL4)}, 2, v0\nv_mov_b32 {v(vZero)}, 0")
        if self.stamps: a(f"v_mov_b32 {v(vStamp)}, 0")
        self.stamp(0, vStamp)
        for k in range(4): a(f"v_mov_b32 {v(ones+k)}, 0x3f803f80")
        for (sm, pat) in ((sM1, 0x22222222), (sM2, 0x44444444), (sM3, 0x88888888), (sMK, 0x000F000F), (sM8, 0x01000100)):
            a(f"s_mov_b32 {s(sm)}, {hex(pat)}\ns_mov_b32 {s(sm+1)}, {hex(pat)}")

        acc = R.alloc("acc", 48, 4)
        cs = R.alloc("cs", 12, 4)
        s1 = R.alloc("s1", 4, 4); s2 = R.alloc("s2", 4, 4)
        fr = [dict(x=R.alloc(f"x{b}", 16, 4), xs=R.alloc(f"xs{b}", 4, 4), w=R.alloc(f"w{b}", 12, 4)) for b in range(2)]
        vA = [R.alloc("vA0"), R.alloc("vA1")]; vS = [R.alloc("vS0"), R.alloc("vS1")]
        vBb = [R.alloc(f"vBb{T}") for T in range(3)]; vB = [R.alloc(f"vB{T}") for T in range(3)]
        vQb = [R.alloc(f"vQb{T}") for T in range(2)]
        ACC = lambda t, T: acc + (t*3 + T)*4
        t0, t1, t2, t3 = vT, vT+1, vT+2, vT+3
        a(f"v_lshrrev_b32 {v(t0)}, 3, {v(vM)}\nv_lshlrev_b32 {v(t0)}, 10, {v(t0)}")
        a(f"v_and_b32 {v(t1)}, 7, {v(vM)}\nv_lshlrev_b32 {v(t1)}, 7, {v(t1)}\nv_add_u32 {v(t0)}, {v(t0)}, {v(t1)}")
        a(f"v_and_b32 {v(t1)}, 6, {v(vM)}\nv_xor_b32 {v(t1)}, {v(t1)}, {v(vG)}\nv_lshlrev_b32 {v(t1)}, 4, {v(t1)}\nv_add_u32 {v(vA[0])}, {v(t0)}, {v(t1)}")
        a(f"v_xor_b32 {v(vA[1])}, 64, {v(vA[0])}")
        a(f"s_lshl_b32 {s(sT0)}, {s(sW)}, 11")
        a(f"v_add_u32 {v(vS[0])}, {s(sT0)}, {v(vA[0])}\nv_add_u32 {v(vS[1])}, {s(sT0)}, {v(vA[1])}")
        vRow = R.alloc("rowslot"); vC = R.alloc("c")
        a(f"v_lshrrev_b32 {v(t0)}, 2, {v(vM)}\nv_lshl_add_u32 {v(vRow)}, {v(vG)}, 2, {v(t0)}\nv_and_b32 {v(vC)}, 3, v0")
        a(f"v_mul_u32_u24 {v(t0)}, 160, {v(vRow)}")
        a(f"s_mul_i32 {s(sT0)}, {s(sW)}, 40\ns_add_u32 {s(sT0)}, {s(sT0)}, {RING1}")
        a(f"v_add_u32 {v(t0)}, {s(sT0)}, {v(t0)}")
        a(f"v_lshlrev_b32 {v(t1)}, 3, {v(vC)}")
        a(f"v_add_u32 {v(vBb[0])}, {v(t0)}, {v(t1)}")
        a(f"v_mov_b32 {v(vQb[0])}, {v(vBb[0])}")
        a(f"v_add_u32 {v(vQb[1])}, 32, {v(t0)}")
        a(f"v_add_u32 {v(t2)}, {5120-8}, {v(t1)}\nv_cmp_eq_u32 vcc, 0, {v(vC)}\ns_nop 1\nv_cndmask_b32 {v(t2)}, {v(t2)}, {32}, vcc".replace(f"v_cndmask_b32 {v(t2)}, {v(t2)}, 32, vcc", f"v_mov_b32 {v(t3)}, 32\nv_cndmask_b32 {v(t2)}, {v(t2)}, {v(t3)}, vcc"))
        a(f"v_add_u32 {v(vBb[1])}, {v(t0)}, {v(t2)}")
        a(f"v_mov_b32 {v(t2)}, {5120+32}\nv_mov_b32 {v(t3)}, {5120+24}\nv_cndmask_b32 {v(t2)}, {v(t2)}, {v(t3)}, vcc\nv_add_u32 {v(vBb[2])}, {v(t0)}, {v(t2)}")
        for k in range(48): a(f"v_mov_b32 {v(acc+k)}, 0")
        for k in range(12): a(f"v_mov_b32 {v(cs+k)}, 0")
        for k in range(4): a(f"v_mov_b32 {v(s1+k)}, 0\nv_mov_b32 {v(s2+k)}, 0")
        for k in range(16): a(f"v_mov_b32 {v(fr[1]['x']+k)}, 0")
        for k in range(4): a(f"v_mov_b32 {v(fr[1]['xs']+k)}, 0")
        for k in range(12): a(f"v_mov_b32 {v(fr[1]['w']+k)}, 0")
        a("s_waitcnt lgkmcnt(0)")
        self.tag_finish()

        def kv_reads(b, par):
            f = fr[b]; L = []
            for t in range(4): L.append(f"ds_read_b128 {v(f['x']+4*t,4)}, {v(vA[par])} offset:{t*2048}")
            L.append(f"ds_read_b128 {v(f['xs'],4)}, {v(vS[par])}")
            for T in range(3):
                L.append(f"ds_read_b64_tr_b16 {v(f['w']+4*T,2)}, {v(vB[T])} offset:{par*10240}")
                L.append(f"ds_read_b64_tr_b16 {v(f['w']+4*T+2,2)}, {v(vB[T])} offset:{par*10240+2560}")
            return L
        def kv_mfma(b):
            f = fr[b]; L = []
            for T in range(3):
                for t in range(4): L.append(f"v_mfma_f32_16x16x32_bf16 {v(ACC(t,T),4)}, {v(f['x']+4*t,4)}, {v(f['w']+4*T,4)}, {v(ACC(t,T),4)}")
                L.append(f"v_mfma_f32_16x16x32_bf16 {v(cs+4*T,4)}, {v(ones,4)}, {v(f['w']+4*T,4)}, {v(cs+4*T,4)}")
            L.append(f"v_mfma_f32_16x16x32_bf16 {v(s1,4)}, {v(ones,4)}, {v(f['xs'],4)}, {v(s1,4)}")
            L.append(f"v_mfma_f32_16x16x32_bf16 {v(s2,4)}, {v(f['xs'],4)}, {v(f['xs'],4)}, {v(s2,4)}")
            return L
        def inter(mf, rd):
            for k in range(max(len(mf), len(rd))):
                if k < len(rd): a(rd[k])
                if k < len(mf): a(mf[k])

        a.c("==== P1 KV loop")
        a(f"s_mov_b32 {s(sCnt)}, 0\ns_mov_b32 {s(sSlot)}, 0")
        lp = self.lab("kv")
        a.label(lp)
        a("s_barrier")
        for T in range(3): a(f"v_add_u32 {v(vB[T])}, {s(sSlot)}, {v(vBb[T])}")
        inter(kv_mfma(1), kv_reads(0, 0))
        a("s_waitcnt lgkmcnt(0)")
        inter(kv_mfma(0), kv_reads(1, 1))
        for r in vA + vS: a(f"v_add_u32 {v(r)}, 8192, {v(r)}")
        a(f"s_add_u32 {s(sSlot)}, {s(sSlot)}, 20480\ns_cmp_eq_u32 {s(sSlot)}, 61440\ns_cselect_b32 {s(sSlot)}, 0, {s(sSlot)}")
        a(f"s_add_u32 {s(sCnt)}, {s(sCnt)}, 1\ns_cmp_lt_u32 {s(sCnt)}, 10")
        a("s_waitcnt lgkmcnt(0)")
        a(f"s_cbranch_scc1 {lp}")
        for x in kv_mfma(1): a(x)
        self.stamp(1, vStamp)
        for r in vA + vS: a(f"v_subrev_u32 {v(r)}, {10*8192}, {v(r)}")

        def stats(s1, s2):
            a.c("LN stats -> LDS")
            a("s_nop 7")
            a(f"v_cndmask_b32 {v(t0)}, {v(s2)}, {v(s2+1)}, {s(sM1,2)}")
            a(f"v_cndmask_b32 {v(t0)}, {v(t0)}, {v(s2+2)}, {s(sM2,2)}")
            a(f"v_cndmask_b32 {v(t0)}, {v(t0)}, {v(s2+3)}, {s(sM3,2)}")
            a(f"v_mul_f32 {v(t1)}, {1.0/640!r}, {v(s1)}".replace(repr(1.0/640), "0x3acccccd"))
            a(f"v_mul_f32 {v(t0)}, 0x3acccccd, {v(t0)}")
            a(f"v_fma_f32 {v(t0)}, -{v(t1)}, {v(t1)}, {v(t0)}")
            a(f"v_add_f32 {v(t0)}, 0x3727c5ac, {v(t0)}")
            a(f"v_rsq_f32 {v(t0)}, {v(t0)}")
            a(f"s_lshl_b32 {s(sT0)}, {s(sW)}, 6\ns_add_u32 {s(sT0)}, {s(sT0)}, {ST_RSTD}")
            a(f"v_mul_f32 {v(t1)}, {v(t1)}, {v(t0)}")
            a(f"v_lshl_add_u32 {v(t2)}, {v(vM)}, 2, {s(sT0)}")
            a("s_mov_b32 exec_lo, 0x00F0000F\ns_mov_b32 exec_hi, 0xF0000F00")
            a(f"ds_write_b32 {v(t2)}, {v(t0)}\nds_write_b32 {v(t2)}, {v(t1)} offset:256")
            a("s_mov_b64 exec, -1")
            a("s_waitcnt lgkmcnt(0)")
        stats(s1, s2)
        a("s_barrier")
        m1 = R.mark()
        rs = R.alloc("rs", 16, 4); mr = R.alloc("mr", 16, 4)
        fb = R.alloc("fb", 24, 4)
        FB = lambda T, u: fb + (T*2 + u)*4
        epsv = R.alloc("epsT1")
        a(f"v_lshlrev_b32 {v(t0)}, 4, {v(vG)}\nv_add_u32 {v(t0)}, {ST_RSTD}, {v(t0)}")
        for t in range(4):
            a(f"ds_read_b128 {v(rs+4*t,4)}, {v(t0)} offset:{t*64}")
            a(f"ds_read_b128 {v(mr+4*t,4)}, {v(t0)} offset:{256+t*64}")
        a(f"v_mov_b32 {v(t1)}, 0x358637bd\nv_cndmask_b32 {v(epsv)}, 0, {v(t1)}, {s(sMK,2)}")
        a("s_waitcnt lgkmcnt(0)")
        LOG2E = "0x3fb8aa3b"; EPS6 = "0x358637bd"
        a(f"s_mov_b32 {s(sT1)}, {LOG2E}\ns_mov_b32 {s(sT2)}, {EPS6}")
        for t in range(4):
            for T in range(3):
                for r in range(4):
                    y = ACC(t,T)+r
                    a(f"v_mul_f32 {v(t0)}, {v(mr+4*t+r)}, {v(cs+4*T)}")
                    if T == 0: a(f"v_subrev_f32 {v(t0)}, {s(sT2)}, {v(t0)}")
                    if T == 1: a(f"v_sub_f32 {v(t0)}, {v(t0)}, {v(epsv)}")
                    a(f"v_fma_f32 {v(y)}, {v(y)}, {v(rs+4*t+r)}, -{v(t0)}")
                    if T < 2:
                        a(f"v_mul_f32 {v(t1)}, {s(sT1)}, {v(y)}")
                        a(f"v_exp_f32_e64 {v(t1)}, {v(t1)} clamp")
                        a(f"v_max_f32 {v(t2)}, {s(sT2)}, {v(y)}")
                        if T == 0:
                            a(f"v_add_f32 {v(y)}, {v(t1)}, {v(t2)}")
                        else:
                            a(f"v_add_f32 {v(t1)}, {v(t1)}, {v(t2)}")
                            a(f"v_cndmask_b32 {v(y)}, {v(y)}, {v(t1)}, {s(sMK,2)}")
                    else:
                        a(f"v_cndmask_b32 {v(y)}, {v(y)}, 1.0, {s(sM8,2)}")
            for T in range(3):
                u, hf = t >> 1, t & 1
                a(f"v_cvt_pk_bf16_f32 {v(FB(T,u)+2*hf)}, {v(ACC(t,T))}, {v(ACC(t,T)+1)}")
                a(f"v_cvt_pk_bf16_f32 {v(FB(T,u)+2*hf+1)}, {v(ACC(t,T)+2)}, {v(ACC(t,T)+3)}")
        P = R.alloc("P", 16, 4)
        a("s_nop 1")
        for u in range(2):
            for k, (TA, TB) in enumerate(((0,1), (0,2), (1,1), (1,2))):
                c = "0" if u == 0 else v(P+4*k,4)
                a(f"v_mfma_f32_16x16x32_bf16 {v(P+4*k,4)}, {v(FB(TA,u),4)}, {v(FB(TB,u),4)}, {c}")
        a(f"s_lshl_b32 {s(sT0)}, {s(sH)}, 5\ns_add_u32 {s(sT0)}, {s(sT0)}, {s(sI)}\ns_mul_i32 {s(sT0)}, {s(sT0)}, 2560\ns_add_u32 {s(sT0)}, {s(sT0)}, {WS_PART}")
        a("s_nop 7")
        a(f"buffer_store_dwordx4 {v(P,4)}, {v(vL16)}, {s(rWS,4)}, {s(sT0)} offen sc1")
        a(f"buffer_store_dwordx4 {v(P+4,4)}, {v(vL16)}, {s(rWS,4)}, {s(sT0)} offen offset:1024 sc1")
        a("s_mov_b64 exec, 0xffff")
        a(f"buffer_store_dwordx4 {v(P+8,4)}, {v(vL16)}, {s(rWS,4)}, {s(sT0)} offen offset:2048 sc1")
        a(f"buffer_store_dwordx4 {v(P+12,4)}, {v(vL16)}, {s(rWS,4)}, {s(sT0)} offen offset:2304 sc1")
        a("s_mov_b64 exec, -1")
        self.stamp(2, vStamp)

        accq = acc
        csq = cs
        ACQ = lambda t, T: accq + (t*2 + T)*4
        fq = [dict(x=fr[b]['x'], w=fr[b]['w']) for b in range(2)]
        vQ = [vB[0], vB[1]]
        for k in range(32): a(f"v_mov_b32 {v(accq+k)}, 0")
        for k in range(8): a(f"v_mov_b32 {v(csq+k)}, 0")
        for k in range(16): a(f"v_mov_b32 {v(fq[1]['x']+k)}, 0")
        for k in range(8): a(f"v_mov_b32 {v(fq[1]['w']+k)}, 0")
        def q_reads(b, u):
            f = fq[b]; L = []
            for t in range(4): L.append(f"ds_read_b128 {v(f['x']+4*t,4)}, {v(vA[u&1])} offset:{(u>>1)*8192 + t*2048}")
            for T in range(2):
                L.append(f"ds_read_b64_tr_b16 {v(f['w']+4*T,2)}, {v(vQ[T])} offset:{u*5120}")
                L.append(f"ds_read_b64_tr_b16 {v(f['w']+4*T+2,2)}, {v(vQ[T])} offset:{u*5120+2560}")
            return L
        def q_mfma(b):
            f = fq[b]; L = []
            for T in range(2):
                for t in range(4): L.append(f"v_mfma_f32_16x16x32_bf16 {v(ACQ(t,T),4)}, {v(f['w']+4*T,4)}, {v(f['x']+4*t,4)}, {v(ACQ(t,T),4)}")
                L.append(f"v_mfma_f32_16x16x32_bf16 {v(csq+4*T,4)}, {v(f['w']+4*T,4)}, {v(ones,4)}, {v(csq+4*T,4)}")
            return L
        a.c("==== P1 Q loop (first barrier B10 already passed; slot continues: group g uses slot (10+g)%3)")
        a(f"s_mov_b32 {s(sCnt)}, 0\ns_mov_b32 {s(sSlot)}, {(10 % 3)*20480}")
        lp = self.lab("q"); sk = self.lab("qskip"); sk2 = self.lab("qskip")
        a.label(lp)
        a(f"s_cmp_eq_u32 {s(sCnt)}, 0\ns_cbranch_scc1 {sk}")
        a("s_barrier")
        a.label(sk)
        for T in range(2): a(f"v_add_u32 {v(vQ[T])}, {s(sSlot)}, {v(vQb[T])}")
        inter(q_mfma(1), q_reads(0, 0)); a("s_waitcnt lgkmcnt(0)")
        inter(q_mfma(0), q_reads(1, 1)); a("s_waitcnt lgkmcnt(0)")
        inter(q_mfma(1), q_reads(0, 2)); a("s_waitcnt lgkmcnt(0)")
        inter(q_mfma(0), q_reads(1, 3))
        for r in vA: a(f"v_add_u32 {v(r)}, 16384, {v(r)}")
        a(f"s_cmp_lg_u32 {s(sCnt)}, 0\ns_cbranch_scc1 {sk2}")
        a("s_waitcnt vmcnt(0)")
        a(f"s_lshl_b32 {s(sT0)}, {s(sH)}, 7\ns_lshl_b32 {s(sT1)}, {s(sI)}, 2\ns_add_u32 {s(sT0)}, {s(sT0)}, {s(sT1)}\ns_add_u32 {s(sT0)}, {s(sT0)}, {WS_F1}")
        self.flag_store(sT0, t0, vZero)
        a.label(sk2)
        a(f"s_add_u32 {s(sSlot)}, {s(sSlot)}, 20480\ns_cmp_eq_u32 {s(sSlot)}, 61440\ns_cselect_b32 {s(sSlot)}, 0, {s(sSlot)}")
        a(f"s_add_u32 {s(sCnt)}, {s(sCnt)}, 1\ns_cmp_lt_u32 {s(sCnt)}, 5")
        a("s_waitcnt lgkmcnt(0)")
        a(f"s_cbranch_scc1 {lp}")
        for x in q_mfma(1): a(x)
        self.stamp(3, vStamp)
        R.reset(m1)
        rq = R.alloc("rq", 4, 4); mq = R.alloc("mq", 4, 4)
        pq = R.alloc("pq", 16, 4)
        a(f"v_lshlrev_b32 {v(t0)}, 2, {v(vM)}\nv_add_u32 {v(t0)}, {ST_RSTD}, {v(t0)}")
        for t in range(4):
            a(f"ds_read_b32 {v(rq+t)}, {v(t0)} offset:{t*64}")
            a(f"ds_read_b32 {v(mq+t)}, {v(t0)} offset:{256+t*64}")
        a(f"v_and_b32 {v(t0)}, 7, {v(vM)}")
        a(f"v_lshrrev_b32 {v(t1)}, 3, {v(vM)}\ns_lshl_b32 {s(sT0)}, {s(sW)}, 1\nv_add_u32 {v(t1)}, {s(sT0)}, {v(t1)}")
        a(f"v_lshlrev_b32 {v(t1)}, 10, {v(t1)}\nv_lshl_add_u32 {v(t1)}, {v(t0)}, 7, {v(t1)}")
        a(f"v_and_b32 {v(t0)}, 6, {v(t0)}")
        a(f"s_mul_i32 {s(sT0)}, {s(sJ)}, 160")
        for T in range(5):
            a(f"s_add_u32 {s(sT1)}, {s(sT0)}, {32*T}")
            a(f"v_lshl_add_u32 {v(t2)}, {v(vG)}, 3, {s(sT1)}")
            a(f"v_lshrrev_b32 {v(t3)}, 7, {v(t2)}\nv_lshlrev_b32 {v(t3)}, 13, {v(t3)}\nv_add_u32 {v(t3)}, {v(t3)}, {v(t1)}")
            a(f"v_bfe_u32 {v(vT+4)}, {v(t2)}, 4, 3\nv_xor_b32 {v(vT+4)}, {v(vT+4)}, {v(t0)}\nv_lshl_add_u32 {v(t3)}, {v(vT+4)}, 4, {v(t3)}")
            a(f"v_and_b32 {v(t2)}, 8, {v(t2)}\nv_add_u32 {v(t3)}, {v(t3)}, {v(t2)}")
            a(f"ds_read_b64 {v(vXres+2*T,2)}, {v(t3)}")
        a("s_waitcnt lgkmcnt(0)")
        a("s_barrier")
        a(f"s_mov_b32 {s(sT1)}, {LOG2E}\ns_mov_b32 {s(sT2)}, {EPS6}")
        for t in range(4):
            for T in range(2):
                for r in range(4):
                    y = ACQ(t,T)+r
                    a(f"v_mul_f32 {v(t0)}, {v(mq+t)}, {v(csq+4*T+r)}")
                    a(f"v_subrev_f32 {v(t0)}, {s(sT2)}, {v(t0)}")
                    a(f"v_fma_f32 {v(y)}, {v(y)}, {v(rq+t)}, -{v(t0)}")
                    a(f"v_mul_f32 {v(t1)}, {s(sT1)}, {v(y)}")
                    a(f"v_exp_f32_e64 {v(t1)}, {v(t1)} clamp")
                    a(f"v_max_f32 {v(t2)}, {s(sT2)}, {v(y)}")
                    a(f"v_add_f32 {v(y)}, {v(t1)}, {v(t2)}")
                a(f"v_cvt_pk_bf16_f32 {v(pq+4*t+2*T)}, {v(ACQ(t,T))}, {v(ACQ(t,T)+1)}")
                a(f"v_cvt_pk_bf16_f32 {v(pq+4*t+2*T+1)}, {v(ACQ(t,T)+2)}, {v(ACQ(t,T)+3)}")
        self.stamp(4, vStamp)
        a(f"s_lshl_b32 {s(sT0)}, {s(sH)}, 7\ns_add_u32 {s(sT0)}, {s(sT0)}, {WS_F2}")
        self.poll(10, sT0, t0, vL4)
        self.stamp(5, vStamp)
        raw = fr[0]["x"]
        kf = R.alloc("kf", 12, 4)
        va = R.alloc("va", 6, 2)
        BIG = 0x7ff00000
        a(f"v_lshlrev_b32 {v(t0)}, 8, {v(vG)}")
        a(f"v_lshlrev_b32 {v(t1)}, 4, {v(vM)}")
        a(f"v_cmp_gt_u32 vcc, 12, {v(vM)}")
        a(f"v_add_u32 {v(t2)}, 64, {v(t1)}\nv_add_u32 {v(t3)}, {1024-192}, {v(t1)}\nv_cndmask_b32 {v(t2)}, {v(t3)}, {v(t2)}, vcc")
        a(f"v_add_u32 {v(va+0)}, {v(t0)}, {v(t2)}")
        a(f"v_add_u32 {v(t2)}, {2048+64}, {v(t1)}\nv_add_u32 {v(t3)}, {2304-192}, {v(t1)}\nv_cndmask_b32 {v(t2)}, {v(t3)}, {v(t2)}, vcc")
        a(f"v_cmp_eq_u32 vcc, 0, {v(vG)}\nv_mov_b32 {v(t3)}, {hex(BIG)}\ns_nop 0\nv_cndmask_b32 {v(va+1)}, {v(t3)}, {v(t2)}, vcc")
        a(f"v_min_u32 {v(t1)}, 3, {v(vM)}\nv_lshlrev_b32 {v(t1)}, 4, {v(t1)}")
        a(f"v_add_u32 {v(t2)}, {1024+64}, {v(t1)}\nv_add_u32 {v(va+2)}, {v(t0)}, {v(t2)}")
        a(f"v_add_u32 {v(t2)}, {2304+64}, {v(t1)}\nv_cndmask_b32 {v(va+3)}, {v(t3)}, {v(t2)}, vcc")
        a(f"v_add_u32 {v(va+4)}, {1024+128}, {v(t0)}")
        a(f"v_mov_b32 {v(t2)}, {2304+128}\nv_cndmask_b32 {v(va+5)}, {v(t3)}, {v(t2)}, vcc")
        a(f"s_mul_i32 {s(sT0)}, {s(sH)}, 2560\ns_add_u32 {s(sT0)}, {s(sT0)}, {WS_KVS}")
        for k in range(6): a(f"buffer_load_dwordx4 {v(raw+4*k,4)}, {v(va+k)}, {s(rWS,4)}, {s(sT0)} offen sc1")
        a("s_waitcnt vmcnt(0)")
        for k in range(6):
            a(f"v_cvt_pk_bf16_f32 {v(kf+2*k)}, {v(raw+4*k)}, {v(raw+4*k+1)}\nv_cvt_pk_bf16_f32 {v(kf+2*k+1)}, {v(raw+4*k+2)}, {v(raw+4*k+3)}")
        nn = acc
        a("s_nop 1")
        for t in range(4):
            for k in range(3):
                a(f"v_mfma_f32_16x16x32_bf16 {v(nn+(t*3+k)*4,4)}, {v(kf+4*k,4)}, {v(pq+4*t,4)}, 0")
        vo0 = R.alloc("vo0"); vo1 = R.alloc("vo1")
        ob = R.alloc("ob", 4, 2)
        def gran_addr(dst, gam):
            a(f"v_lshrrev_b32 {v(t0)}, 3, {v(gam)}\nv_lshlrev_b32 {v(t0)}, 10, {v(t0)}")
            a(f"v_and_b32 {v(t1)}, 3, {v(gam)}\nv_lshl_add_u32 {v(t1)}, {v(t1)}, 4, {v(vM)}\nv_lshl_add_u32 {v(t0)}, {v(t1)}, 4, {v(t0)}")
            a(f"v_bfe_u32 {v(t1)}, {v(gam)}, 2, 1\nv_lshl_add_u32 {v(dst)}, {v(t1)}, 3, {v(t0)}")
        a(f"s_mul_i32 {s(sT0)}, {s(sH)}, 5")
        a(f"v_add_u32 {v(t2)}, {s(sT0)}, {v(vG)}"); gran_addr(vo0, t2)
        a(f"s_add_u32 {s(sT0)}, {s(sT0)}, 4\nv_mov_b32 {v(t2)}, {s(sT0)}"); gran_addr(vo1, t2)
        a(f"s_lshl_b32 {s(sT0)}, {s(sI)}, 2\ns_mul_i32 {s(sT0)}, {s(sT0)}, 20480\ns_add_u32 {s(sT0)}, {s(sT0)}, {WS_O}")
        for t in range(4):
            n0, n1, dn = nn+(t*3)*4, nn+(t*3+1)*4, nn+(t*3+2)*4
            a(f"v_add_f32 {v(t0)}, {EPS6}, {v(dn)}\nv_rcp_f32 {v(t0)}, {v(t0)}\ns_nop 0")
            for r in range(4): a(f"v_mul_f32 {v(n0+r)}, {v(n0+r)}, {v(t0)}\nv_mul_f32 {v(n1+r)}, {v(n1+r)}, {v(t0)}")
            a(f"v_cvt_pk_bf16_f32 {v(n0)}, {v(n0)}, {v(n0+1)}\nv_cvt_pk_bf16_f32 {v(n0+1)}, {v(n0+2)}, {v(n0+3)}")
            a(f"v_cvt_pk_bf16_f32 {v(n1)}, {v(n1)}, {v(n1+1)}\nv_cvt_pk_bf16_f32 {v(n1+1)}, {v(n1+2)}, {v(n1+3)}")
            a(f"buffer_store_dwordx2 {v(n0,2)}, {v(vo0)}, {s(rWS,4)}, {s(sT0)} offen sc1")
            a("s_mov_b64 exec, 0xffff")
            a(f"buffer_store_dwordx2 {v(n1,2)}, {v(vo1)}, {s(rWS,4)}, {s(sT0)} offen sc1")
            a("s_mov_b64 exec, -1")
            if t < 3: a(f"s_add_u32 {s(sT0)}, {s(sT0)}, 20480")
        a("s_waitcnt vmcnt(0)")
        a(f"s_lshl_b32 {s(sT0)}, {s(sI)}, 7\ns_lshl_b32 {s(sT1)}, {s(sH)}, 2\ns_add_u32 {s(sT9)}, {s(sT0)}, {s(sT1)}")
        a(f"s_add_u32 {s(sT0)}, {s(sT9)}, {WS_F3}")
        self.flag_store(sT0, t0, vZero)
        self.stamp(6, vStamp)
        sk = self.lab("ep")
        a(f"s_or_b32 {s(sT0)}, s2, {s(sWave)}\ns_cmp_lg_u32 {s(sT0)}, 0\ns_cbranch_scc1 {sk}")
        a(f"s_mov_b32 {s(sT0)}, {WS_EPOCH}")
        self.flag_store(sT0, t0, vZero)
        a.label(sk)

        a.c("==== P3")
        R.reset(base_mark)
        oa = R.alloc("oa", 80, 4)
        acc3 = R.alloc("acc3", 20, 4)
        f3 = [R.alloc(f"f3{b}", 20, 4) for b in range(2)]
        vB3 = [R.alloc("vB3a"), R.alloc("vB3b")]
        a(f"s_lshl_b32 {s(sT0)}, {s(sI)}, 7\ns_add_u32 {s(sT0)}, {s(sT0)}, {WS_F3}")
        self.poll(32, sT0, t0, vL4)
        self.stamp(7, vStamp)
        a(f"s_lshl_b32 {s(sT0)}, {s(sI)}, 2\ns_add_u32 {s(sT0)}, {s(sT0)}, {s(sW)}\ns_mul_i32 {s(sT0)}, {s(sT0)}, 20480\ns_add_u32 {s(sT0)}, {s(sT0)}, {WS_O}")
        for st in range(20):
            a(f"buffer_load_dwordx4 {v(oa+4*st,4)}, {v(vL16)}, {s(rWS,4)}, {s(sT0)} offen offset:{(st&3)*1024} sc1")
            if (st & 3) == 3 and st < 19: a(f"s_add_u32 {s(sT0)}, {s(sT0)}, 4096")
        a(f"v_lshrrev_b32 {v(t0)}, 2, {v(vM)}\nv_lshl_add_u32 {v(t0)}, {v(vG)}, 2, {v(t0)}\nv_mul_u32_u24 {v(t0)}, 160, {v(t0)}")
        a(f"v_and_b32 {v(t1)}, 3, v0\nv_lshl_add_u32 {v(vB3[0])}, {v(t1)}, 3, {v(t0)}\nv_add_u32 {v(vB3[1])}, 51200, {v(vB3[0])}")
        if True:
            a(f"v_add_u32 {v(vB3[0])}, {WO_T}, {v(vB3[0])}\nv_add_u32 {v(vB3[1])}, {WO_T}, {v(vB3[1])}")
        for k in range(20): a(f"v_mov_b32 {v(acc3+k)}, 0")
        a("s_barrier")
        def p3_reads(b, st):
            L = []; base = vB3[st // 10]; o = (st % 10)*5120
            for T in range(5):
                L.append(f"ds_read_b64_tr_b16 {v(f3[b]+4*T,2)}, {v(base)} offset:{o + T*32}")
                L.append(f"ds_read_b64_tr_b16 {v(f3[b]+4*T+2,2)}, {v(base)} offset:{o + T*32 + 2560}")
            return L
        def p3_mfma(b, st):
            return [f"v_mfma_f32_16x16x32_bf16 {v(acc3+4*T,4)}, {v(f3[b]+4*T,4)}, {v(oa+4*st,4)}, {v(acc3+4*T,4)}" for T in range(5)]
        for x in p3_reads(0, 0): a(x)
        for st in range(20):
            a(f"s_waitcnt vmcnt({19-st}) lgkmcnt(0)")
            mf = p3_mfma(st & 1, st)
            rd = p3_reads((st+1) & 1, st+1) if st < 19 else []
            for k in range(5):
                if rd: a(rd[2*k]); a(rd[2*k+1])
                a(mf[k])
        a("s_barrier")
        self.stamp(8, vStamp)
        a("s_nop 7")
        a(f"s_mov_b32 {s(sT1)}, 0xffff0000")
        a(f"s_lshl_b32 {s(sT0)}, {s(sI)}, 2\ns_add_u32 {s(sT0)}, {s(sT0)}, {s(sW)}\ns_mul_i32 {s(sT0)}, {s(sT0)}, 20480\ns_add_u32 {s(sT0)}, {s(sT0)}, {WS_H}")
        a(f"s_mul_i32 {s(sT2)}, {s(sJ)}, 5")
        for T in range(5):
            for pr in range(2):
                xr = vXres + 2*T + pr
                a(f"v_lshlrev_b32 {v(t0)}, 16, {v(xr)}\nv_and_b32 {v(t1)}, {s(sT1)}, {v(xr)}")
                a(f"v_add_f32 {v(t0)}, {v(t0)}, {v(acc3+4*T+2*pr)}\nv_add_f32 {v(t1)}, {v(t1)}, {v(acc3+4*T+2*pr+1)}")
                a(f"v_cvt_pk_bf16_f32 {v(xr)}, {v(t0)}, {v(t1)}")
            a(f"s_add_u32 {s(sT3)}, {s(sT2)}, {T}\ns_lshr_b32 {s(sT4)}, {s(sT3)}, 1\ns_lshl_b32 {s(sT4)}, {s(sT4)}, 10\ns_and_b32 {s(sT3)}, {s(sT3)}, 1\ns_lshl_b32 {s(sT3)}, {s(sT3)}, 3")
            a(f"s_add_u32 {s(sT3)}, {s(sT3)}, {s(sT4)}\ns_add_u32 {s(sT3)}, {s(sT3)}, {s(sT0)}")
            a(f"buffer_store_dwordx2 {v(vXres+2*T,2)}, {v(vL16)}, {s(rWS,4)}, {s(sT3)} offen sc1")
        a("s_waitcnt vmcnt(0)")
        a(f"s_add_u32 {s(sT0)}, {s(sT9)}, {WS_F4}")
        self.flag_store(sT0, t0, vZero)
        self.stamp(9, vStamp)

        a.c("==== P4")
        R.reset(base_mark)
        acc4 = R.alloc("acc4", 48, 4); cs4 = R.alloc("cs4", 12, 4)
        s14 = R.alloc("s14", 4, 4); s24 = R.alloc("s24", 4, 4)
        f4 = [dict(x=R.alloc(f"h{b}", 16, 4), xs=R.alloc(f"hs{b}", 4, 4), w=R.alloc(f"w4{b}", 12, 4)) for b in range(2)]
        vA4 = R.alloc("vA4"); vS4 = R.alloc("vS4")
        vBb4 = [R.alloc(f"vBb4{T}") for T in range(3)]; vB4 = [R.alloc(f"vB4{T}") for T in range(3)]
        b1r = R.alloc("b1r", 6, 2)
        AC4 = lambda t, T: acc4 + (t*3 + T)*4
        self.srd(rB1, pB1, 3072)
        a(f"s_mul_i32 {s(sT0)}, {s(sJ)}, 384\ns_mul_i32 {s(sT1)}, {s(sW)}, 96\ns_add_u32 {s(sT0)}, {s(sT0)}, {s(sT1)}")
        a(f"v_lshlrev_b32 {v(t0)}, 3, {v(vG)}")
        for T in range(3): a(f"buffer_load_dwordx2 {v(b1r+2*T,2)}, {v(t0)}, {s(rB1,4)}, {s(sT0)} offen offset:{32*T}")
        a(f"v_add_u32 {v(vA4)}, {A4}, {v(vL16)}")
        a(f"s_lshl_b32 {s(sT0)}, {s(sW)}, 10\nv_add_u32 {v(vS4)}, {s(sT0)}, {v(vA4)}")
        a(f"v_lshrrev_b32 {v(t0)}, 2, {v(vM)}\nv_lshl_add_u32 {v(t0)}, {v(vG)}, 2, {v(t0)}")
        a(f"v_bfe_u32 {v(t1)}, {v(t0)}, 1, 2")
        a(f"v_mul_u32_u24 {v(t0)}, 384, {v(t0)}\nv_and_b32 {v(t2)}, 3, v0\nv_lshl_add_u32 {v(t0)}, {v(t2)}, 3, {v(t0)}\nv_add_u32 {v(t0)}, {RING4}, {v(t0)}")
        a(f"s_mul_i32 {s(sT0)}, {s(sW)}, 3")
        for T in range(3):
            a(f"s_add_u32 {s(sT1)}, {s(sT0)}, {T}\nv_add_u32 {v(t2)}, {s(sT1)}, {v(t1)}")
            a(f"v_subrev_u32 {v(t3)}, 12, {v(t2)}\nv_cmp_le_u32 vcc, 12, {v(t2)}\ns_nop 1\nv_cndmask_b32 {v(t2)}, {v(t2)}, {v(t3)}, vcc")
            a(f"v_lshl_add_u32 {v(vBb4[T])}, {v(t2)}, 5, {v(t0)}")
        for k in range(48): a(f"v_mov_b32 {v(acc4+k)}, 0")
        for k in range(12): a(f"v_mov_b32 {v(cs4+k)}, 0")
        for k in range(4): a(f"v_mov_b32 {v(s14+k)}, 0\nv_mov_b32 {v(s24+k)}, 0")
        for k in range(16): a(f"v_mov_b32 {v(f4[1]['x']+k)}, 0")
        for k in range(4): a(f"v_mov_b32 {v(f4[1]['xs']+k)}, 0")
        for k in range(12): a(f"v_mov_b32 {v(f4[1]['w']+k)}, 0")
        def p4_reads(b, par):
            f = f4[b]; L = []
            for t in range(4): L.append(f"ds_read_b128 {v(f['x']+4*t,4)}, {v(vA4)} offset:{par*4096 + t*1024}")
            L.append(f"ds_read_b128 {v(f['xs'],4)}, {v(vS4)} offset:{par*4096}")
            for T in range(3):
                L.append(f"ds_read_b64_tr_b16 {v(f['w']+4*T,2)}, {v(vB4[T])} offset:{par*12288}")
                L.append(f"ds_read_b64_tr_b16 {v(f['w']+4*T+2,2)}, {v(vB4[T])} offset:{par*12288+6144}")
            return L
        def p4_mfma(b):
            f = f4[b]; L = []
            for T in range(3):
                for t in range(4): L.append(f"v_mfma_f32_16x16x32_bf16 {v(AC4(t,T),4)}, {v(f['w']+4*T,4)}, {v(f['x']+4*t,4)}, {v(AC4(t,T),4)}")
                L.append(f"v_mfma_f32_16x16x32_bf16 {v(cs4+4*T,4)}, {v(f['w']+4*T,4)}, {v(ones,4)}, {v(cs4+4*T,4)}")
            L.append(f"v_mfma_f32_16x16x32_bf16 {v(s14,4)}, {v(ones,4)}, {v(f['xs'],4)}, {v(s14,4)}")
            L.append(f"v_mfma_f32_16x16x32_bf16 {v(s24,4)}, {v(f['xs'],4)}, {v(f['xs'],4)}, {v(s24,4)}")
            return L
        a(f"s_mov_b32 {s(sCnt)}, 0\ns_mov_b32 {s(sSlot)}, 0")
        lp = self.lab("p4")
        a.label(lp)
        a("s_barrier")
        for T in range(3): a(f"v_add_u32 {v(vB4[T])}, {s(sSlot)}, {v(vBb4[T])}")
        inter(p4_mfma(1), p4_reads(0, 0))
        a("s_waitcnt lgkmcnt(0)")
        inter(p4_mfma(0), p4_reads(1, 1))
        a(f"v_add_u32 {v(vA4)}, 8192, {v(vA4)}\nv_add_u32 {v(vS4)}, 8192, {v(vS4)}")
        a(f"s_add_u32 {s(sSlot)}, {s(sSlot)}, 24576\ns_cmp_eq_u32 {s(sSlot)}, 73728\ns_cselect_b32 {s(sSlot)}, 0, {s(sSlot)}")
        a(f"s_add_u32 {s(sCnt)}, {s(sCnt)}, 1\ns_cmp_lt_u32 {s(sCnt)}, 10")
        a("s_waitcnt lgkmcnt(0)")
        a(f"s_cbranch_scc1 {lp}")
        for x in p4_mfma(1): a(x)
        self.stamp(10, vStamp)
        stats(s14, s24)
        a("s_barrier")
        rq = R.alloc("rq4", 4, 4); mq = R.alloc("mq4", 4, 4); b1f = R.alloc("b1f", 12, 4)
        a(f"v_lshlrev_b32 {v(t0)}, 2, {v(vM)}\nv_add_u32 {v(t0)}, {ST_RSTD}, {v(t0)}")
        for t in range(4):
            a(f"ds_read_b32 {v(rq+t)}, {v(t0)} offset:{t*64}")
            a(f"ds_read_b32 {v(mq+t)}, {v(t0)} offset:{256+t*64}")
        a("s_waitcnt vmcnt(0) lgkmcnt(0)")
        a(f"s_mov_b32 {s(sT1)}, 0xffff0000")
        for T in range(3):
            for pr in range(2):
                a(f"v_lshlrev_b32 {v(b1f+4*T+2*pr)}, 16, {v(b1r+2*T+pr)}\nv_and_b32 {v(b1f+4*T+2*pr+1)}, {s(sT1)}, {v(b1r+2*T+pr)}")
        import struct, math
        f2h = lambda x: hex(struct.unpack("<I", struct.pack("<f", x))[0])
        c1 = -2.0*math.log2(math.e)*math.sqrt(2.0/math.pi); c2 = c1*0.044715
        a(f"s_mov_b32 {s(sT1)}, {f2h(c1)}\ns_mov_b32 {s(sT2)}, {f2h(c2)}")
        a(f"v_mov_b32 {v(vT+4)}, {s(sT1)}")
        a(f"s_lshl_b32 {s(sT0)}, {s(sI)}, 2\ns_mul_i32 {s(sT0)}, {s(sT0)}, 49152\ns_add_u32 {s(sT0)}, {s(sT0)}, {WS_H1}")
        a(f"s_mul_i32 {s(sT3)}, {s(sJ)}, 12\ns_mul_i32 {s(sT4)}, {s(sW)}, 3\ns_add_u32 {s(sT3)}, {s(sT3)}, {s(sT4)}")
        for T in range(3):
            a(f"s_add_u32 {s(sT4)}, {s(sT3)}, {T}\ns_lshr_b32 {s(sT5)}, {s(sT4)}, 1\ns_lshl_b32 {s(sT5)}, {s(sT5)}, 10\ns_and_b32 {s(sT4)}, {s(sT4)}, 1\ns_lshl_b32 {s(sT4)}, {s(sT4)}, 3")
            a(f"s_add_u32 {s(sT4)}, {s(sT4)}, {s(sT5)}\ns_add_u32 {s(sT4)}, {s(sT4)}, {s(sT0)}")
            for t in range(4):
                for r in range(4):
                    y = AC4(t,T)+r
                    a(f"v_fma_f32 {v(t0)}, -{v(mq+t)}, {v(cs4+4*T+r)}, {v(b1f+4*T+r)}")
                    a(f"v_fma_f32 {v(y)}, {v(y)}, {v(rq+t)}, {v(t0)}")
                    a(f"v_mul_f32 {v(t1)}, {v(y)}, {v(y)}")
                    a(f"v_fma_f32 {v(t1)}, {v(t1)}, {s(sT2)}, {v(vT+4)}")
                    a(f"v_mul_f32 {v(t1)}, {v(t1)}, {v(y)}")
                    a(f"v_exp_f32 {v(t1)}, {v(t1)}")
                    a("s_nop 0")
                    a(f"v_add_f32 {v(t1)}, 1.0, {v(t1)}")
                    a(f"v_rcp_f32 {v(t1)}, {v(t1)}")
                    a("s_nop 0")
                    a(f"v_mul_f32 {v(y)}, {v(y)}, {v(t1)}")
                y = AC4(t,T)
                a(f"v_cvt_pk_bf16_f32 {v(y)}, {v(y)}, {v(y+1)}\nv_cvt_pk_bf16_f32 {v(y+1)}, {v(y+2)}, {v(y+3)}")
                a(f"buffer_store_dwordx2 {v(y,2)}, {v(vL16)}, {s(rWS,4)}, {s(sT4)} offen sc1")
                if t < 3: a(f"s_add_u32 {s(sT4)}, {s(sT4)}, 49152")
        a("s_waitcnt vmcnt(0)")
        a(f"s_add_u32 {s(sT0)}, {s(sT9)}, {WS_F5}")
        self.flag_store(sT0, t0, vZero)
        self.stamp(11, vStamp)

        a.c("==== P5")
        R.reset(base_mark)
        WIN = 32
        ha = R.alloc("ha", 4*WIN, 4)
        acc5 = R.alloc("acc5", 20, 4)
        f5 = [R.alloc(f"f5{b}", 20, 4) for b in range(2)]
        vBb5 = R.alloc("vBb5"); vB5 = R.alloc("vB5")
        b2r = R.alloc("b2r", 10, 2)
        self.srd(rB2, pB2, 1280); self.srd(rOUT, pOUT, 2621440)
        a(f"s_mul_i32 {s(sT0)}, {s(sJ)}, 160\nv_lshlrev_b32 {v(t0)}, 3, {v(vG)}")
        for T in range(5): a(f"buffer_load_dwordx2 {v(b2r+2*T,2)}, {v(t0)}, {s(rB2,4)}, {s(sT0)} offen offset:{32*T}")
        a(f"v_lshrrev_b32 {v(t0)}, 2, {v(vM)}\nv_lshl_add_u32 {v(t0)}, {v(vG)}, 2, {v(t0)}\nv_mul_u32_u24 {v(t0)}, 160, {v(t0)}")
        a(f"v_and_b32 {v(t1)}, 3, v0\nv_lshl_add_u32 {v(vBb5)}, {v(t1)}, 3, {v(t0)}")
        if RING5: a(f"v_add_u32 {v(vBb5)}, {RING5}, {v(vBb5)}")
        for k in range(20): a(f"v_mov_b32 {v(acc5+k)}, 0")
        a(f"s_lshl_b32 {s(sT0)}, {s(sI)}, 7\ns_add_u32 {s(sT0)}, {s(sT0)}, {WS_F5}")
        self.poll(32, sT0, t0, vL4)
        self.stamp(12, vStamp)
        a(f"s_lshl_b32 {s(sT8)}, {s(sI)}, 2\ns_add_u32 {s(sT8)}, {s(sT8)}, {s(sW)}\ns_mul_i32 {s(sT8)}, {s(sT8)}, 49152\ns_add_u32 {s(sT8)}, {s(sT8)}, {WS_H1}")
        def a5_load(st):
            a(f"buffer_load_dwordx4 {v(ha+4*(st % WIN),4)}, {v(vL16)}, {s(rWS,4)}, {s(sT8)} offen offset:{(st&3)*1024} sc1")
            if (st & 3) == 3: a(f"s_add_u32 {s(sT8)}, {s(sT8)}, 4096")
        for st in range(WIN): a5_load(st)
        issued = WIN
        def p5_reads(b, u):
            L = []
            for T in range(5):
                L.append(f"ds_read_b64_tr_b16 {v(f5[b]+4*T,2)}, {v(vB5)} offset:{u*5120 + T*32}")
                L.append(f"ds_read_b64_tr_b16 {v(f5[b]+4*T+2,2)}, {v(vB5)} offset:{u*5120 + T*32 + 2560}")
            return L
        def p5_mfma(b, st):
            return [f"v_mfma_f32_16x16x32_bf16 {v(acc5+4*T,4)}, {v(f5[b]+4*T,4)}, {v(ha+4*(st % WIN),4)}, {v(acc5+4*T,4)}" for T in range(5)]
        for g in range(12):
            a("s_barrier")
            a(f"v_add_u32 {v(vB5)}, {(g % 7)*20480}, {v(vBb5)}")
            for u in range(4):
                st = 4*g + u
                rd = p5_reads(st & 1, u)
                if st > 0:
                    a(f"s_waitcnt vmcnt({issued - st})")
                    mf = p5_mfma((st-1) & 1, st-1)
                    for k in range(5):
                        a(rd[2*k]); a(rd[2*k+1]); a(mf[k])
                    if st - 1 + WIN < 48:
                        a5_load(st - 1 + WIN); issued += 1
                else:
                    for x in rd: a(x)
                a("s_waitcnt lgkmcnt(0)")
        a("s_waitcnt vmcnt(0)")
        for x in p5_mfma(47 & 1, 47): a(x)
        self.stamp(13, vStamp)
        a("s_nop 7")
        a(f"s_mov_b32 {s(sT1)}, 0xffff0000")
        a(f"s_lshl_b32 {s(sT0)}, {s(sI)}, 6\ns_lshl_b32 {s(sT2)}, {s(sW)}, 4\ns_add_u32 {s(sT0)}, {s(sT0)}, {s(sT2)}\ns_mul_i32 {s(sT0)}, {s(sT0)}, 1280\ns_mul_i32 {s(sT2)}, {s(sJ)}, 160\ns_add_u32 {s(sT0)}, {s(sT0)}, {s(sT2)}")
        a(f"v_mul_u32_u24 {v(t2)}, 1280, {v(vM)}\nv_lshl_add_u32 {v(t2)}, {v(vG)}, 3, {v(t2)}")
        for T in range(5):
            for pr in range(2):
                hr = vXres + 2*T + pr; br = b2r + 2*T + pr
                a(f"v_lshlrev_b32 {v(t0)}, 16, {v(hr)}\nv_and_b32 {v(t1)}, {s(sT1)}, {v(hr)}")
                a(f"v_add_f32 {v(t0)}, {v(t0)}, {v(acc5+4*T+2*pr)}\nv_add_f32 {v(t1)}, {v(t1)}, {v(acc5+4*T+2*pr+1)}")
                a(f"v_lshlrev_b32 {v(t3)}, 16, {v(br)}\nv_and_b32 {v(br)}, {s(sT1)}, {v(br)}")
                a(f"v_add_f32 {v(t0)}, {v(t0)}, {v(t3)}\nv_add_f32 {v(t1)}, {v(t1)}, {v(br)}")
                a(f"v_cvt_pk_bf16_f32 {v(hr)}, {v(t0)}, {v(t1)}")
            a(f"buffer_store_dwordx2 {v(vXres+2*T,2)}, {v(t2)}, {s(rOUT,4)}, {s(sT0)} offen offset:{32*T}")
        self.stamp(14, vStamp)
        self.stamp_flush(vStamp, t0)
        a("s_endpgm")
        self.vmax_compute = R.hi

    def loader(self):
        a = self.a
        a.label("L_loader")
        a.c("==== loader waves")
        R = Regs(1, 256)
        vStamp = R.alloc("stamp"); vL16 = R.alloc("l16"); vL4 = R.alloc("l4"); vZero = R.alloc("zero")
        vX = R.alloc("vX"); vW = R.alloc("vW", 5); vWn = R.alloc("vWn", 5); vW1 = R.alloc("vW1", 3)
        t0 = R.alloc("t", 8, 4); t1, t2, t3, t4, t5 = t0+1, t0+2, t0+3, t0+4, t0+5
        red = R.alloc("red", 32, 4)
        if self.stamps: a(f"v_mov_b32 {v(vStamp)}, 0")
        self.stamp(0, vStamp)
        a(f"v_lshrrev_b32 {v(t0)}, 3, v0\nv_and_b32 {v(t1)}, 7, v0\nv_and_b32 {v(t2)}, 6, {v(t0)}\nv_xor_b32 {v(t1)}, {v(t1)}, {v(t2)}")
        a(f"v_mul_u32_u24 {v(t0)}, 1280, {v(t0)}\nv_lshl_add_u32 {v(vX)}, {v(t1)}, 4, {v(t0)}")
        for n in range(5):
            a(f"v_add_u32 {v(t0)}, {64*n}, v0\nv_mul_u32_u24 {v(t1)}, 6554, {v(t0)}\nv_lshrrev_b32 {v(t1)}, 16, {v(t1)}")
            a(f"v_mul_u32_u24 {v(t2)}, 10, {v(t1)}\nv_sub_u32 {v(t2)}, {v(t0)}, {v(t2)}\nv_lshlrev_b32 {v(t2)}, 4, {v(t2)}")
            a(f"v_mul_u32_u24 {v(t3)}, 1280, {v(t1)}\nv_add_u32 {v(vWn+n)}, {v(t3)}, {v(t2)}")
            a(f"v_bfe_u32 {v(t3)}, {v(t1)}, 2, 2\nv_lshlrev_b32 {v(t3)}, 3, {v(t3)}\nv_and_b32 {v(t4)}, 3, {v(t1)}\nv_add_u32 {v(t3)}, {v(t3)}, {v(t4)}")
            a(f"v_lshrrev_b32 {v(t4)}, 4, {v(t1)}\nv_lshl_add_u32 {v(t3)}, {v(t4)}, 2, {v(t3)}")
            a(f"v_mul_u32_u24 {v(t3)}, 3840, {v(t3)}\nv_add_u32 {v(vW+n)}, {v(t3)}, {v(t2)}")
        sXb, sKb, sQb, sM, sS = sT6, sT7, sT8, sT9, sCnt
        a(f"s_lshl_b32 {s(sT0)}, {s(sI)}, 6\ns_lshl_b32 {s(sT1)}, {s(sW)}, 4\ns_add_u32 {s(sT0)}, {s(sT0)}, {s(sT1)}\ns_mul_i32 {s(sXb)}, {s(sT0)}, 1280")
        a(f"s_and_b32 {s(sT0)}, {s(sW)}, 1\ns_add_u32 {s(sT0)}, {s(sT0)}, 1\ns_mul_i32 {s(sT0)}, {s(sT0)}, 1280\ns_mul_i32 {s(sT1)}, {s(sJ)}, 160\ns_add_u32 {s(sT0)}, {s(sT0)}, {s(sT1)}")
        a(f"s_lshr_b32 {s(sT2)}, {s(sW)}, 1\ns_mul_i32 {s(sT2)}, {s(sT2)}, {32*3840}\ns_add_u32 {s(sKb)}, {s(sT0)}, {s(sT2)}")
        a(f"s_mul_i32 {s(sT2)}, {s(sW)}, {32*3840}\ns_add_u32 {s(sQb)}, {s(sT1)}, {s(sT2)}")
        sLK, sLQ, sLX = sT3, sT4, sT5
        a(f"s_lshr_b32 {s(sT0)}, {s(sW)}, 1\ns_mul_i32 {s(sLK)}, {s(sT0)}, 10240\ns_and_b32 {s(sT0)}, {s(sW)}, 1\ns_mul_i32 {s(sT0)}, {s(sT0)}, 5120\ns_add_u32 {s(sLK)}, {s(sLK)}, {s(sT0)}\ns_add_u32 {s(sLK)}, {s(sLK)}, {RING1}")
        a(f"s_mul_i32 {s(sLQ)}, {s(sW)}, 5120\ns_add_u32 {s(sLQ)}, {s(sLQ)}, {RING1}")
        a(f"s_lshl_b32 {s(sLX)}, {s(sW)}, 11")
        issued = []
        def dma(srd, vo, soff_expr, m0_expr, tag, flags=""):
            a(f"s_add_u32 m0, {s(m0_expr[0])}, {m0_expr[1]}")
            a(f"s_add_u32 {s(sT0)}, {s(soff_expr[0])}, {soff_expr[1]}")
            a(f"buffer_load_dwordx4 {v(vo)}, {s(srd,4)}, {s(sT0)} offen {flags}lds".replace("  ", " "))
            issued.append(tag)
        def wait_for(tag):
            last = max(k for k, tg in enumerate(issued) if tg == tag)
            a(f"s_waitcnt vmcnt({len(issued) - 1 - last})")
        def issue_pair(p):
            if p < 10:
                for q in range(2): dma(rX, vX, (sXb, q*8*1280 + p*128), (sLX, XT + p*8192 + q*1024), p)
                for n in range(5): dma(rWQKV, vW+n, (sKb, p*64*3840), (sLK, (p % 3)*20480 + n*1024), p)
            else:
                g = p - 10
                for n in range(5): dma(rWQKV, vW+n, (sQb, g*128*3840), (sLQ, (p % 3)*20480 + n*1024), p)
        issue_pair(0); issue_pair(1)
        a(f"v_lshlrev_b32 {v(vL16)}, 4, v0\nv_lshlrev_b32 {v(vL4)}, 2, v0\nv_mov_b32 {v(vZero)}, 0")
        for n in range(3):
            a(f"v_add_u32 {v(t0)}, {64*n}, v0\nv_mul_u32_u24 {v(t1)}, 2731, {v(t0)}\nv_lshrrev_b32 {v(t1)}, 16, {v(t1)}")
            a(f"v_mul_u32_u24 {v(t2)}, 24, {v(t1)}\nv_sub_u32 {v(t2)}, {v(t0)}, {v(t2)}")
            a(f"v_lshrrev_b32 {v(t3)}, 1, {v(t2)}\nv_bfe_u32 {v(t4)}, {v(t1)}, 1, 2\nv_sub_u32 {v(t3)}, {v(t3)}, {v(t4)}")
            a(f"v_add_u32 {v(t4)}, 12, {v(t3)}\nv_cmp_gt_i32 vcc, 0, {v(t3)}\ns_nop 1\nv_cndmask_b32 {v(t3)}, {v(t3)}, {v(t4)}, vcc")
            a(f"v_and_b32 {v(t2)}, 1, {v(t2)}\nv_lshlrev_b32 {v(t2)}, 4, {v(t2)}\nv_lshl_add_u32 {v(t2)}, {v(t3)}, 5, {v(t2)}")
            a(f"v_mul_u32_u24 {v(t1)}, 3072, {v(t1)}\nv_add_u32 {v(vW1+n)}, {v(t1)}, {v(t2)}")
        self.srd(rWO, pWO, 819200); self.srd(rW1, pW1, 1966080); self.srd(rW2, pW2, 1966080)
        a("s_waitcnt lgkmcnt(0)")
        self.tag_finish()
        for p in range(15):
            wait_for(p)
            a("s_barrier")
            if p == 0: self.stamp(1, vStamp)
            if p + 2 < 15: issue_pair(p + 2)
        self.stamp(2, vStamp)
        a("s_barrier")
        lred = self.lab("red"); lwo_done = self.lab("wodone")
        a(f"s_cmp_ge_u32 {s(sW)}, 2\ns_cbranch_scc1 {lred}")
        sWb, sWl = sT6, sT7
        a(f"s_mul_i32 {s(sT1)}, {s(sJ)}, 160\ns_mul_i32 {s(sT2)}, {s(sW)}, {10*32*1280}\ns_add_u32 {s(sWb)}, {s(sT1)}, {s(sT2)}")
        a(f"s_mul_i32 {s(sWl)}, {s(sW)}, {10*5120}\ns_add_u32 {s(sWl)}, {s(sWl)}, {WO_T}")
        issued.clear()
        for ch in range(10):
            for n in range(5): dma(rWO, vWn+n, (sWb, ch*32*1280), (sWl, ch*5120 + n*1024), "wo")
        a(f"s_branch {lwo_done}")
        a.label(lred)
        l6 = self.lab("r6"); lgo = self.lab("rgo")
        a(f"s_cmp_eq_u32 {s(sW)}, 2\ns_cbranch_scc1 {l6}")
        a(f"s_lshr_b32 {s(sT6)}, s2, 3\ns_and_b32 {s(sT7)}, s2, 7\ns_branch {lgo}")
        a.label(l6)
        a(f"s_cmp_ge_u32 s2, 64\ns_cbranch_scc1 {lwo_done}")
        a(f"s_lshr_b32 {s(sT6)}, s2, 1\ns_and_b32 {s(sT7)}, s2, 1\ns_add_u32 {s(sT7)}, {s(sT7)}, 8")
        a.label(lgo)
        a(f"s_lshl_b32 {s(sT0)}, {s(sT6)}, 7\ns_add_u32 {s(sT0)}, {s(sT0)}, {WS_F1}")
        self.poll(32, sT0, t0, vL4)
        self.stamp(3, vStamp)
        a(f"v_lshrrev_b32 {v(t0)}, 4, v0\nv_mul_u32_u24 {v(t0)}, 2560, {v(t0)}\nv_and_b32 {v(t1)}, 15, v0\nv_lshl_add_u32 {v(t0)}, {v(t1)}, 4, {v(t0)}")
        a(f"s_mul_i32 {s(sT0)}, {s(sT6)}, {32*2560}\ns_lshl_b32 {s(sT1)}, {s(sT7)}, 8\ns_add_u32 {s(sT0)}, {s(sT0)}, {s(sT1)}\ns_add_u32 {s(sT0)}, {s(sT0)}, {WS_PART}")
        for n in range(8):
            a(f"buffer_load_dwordx4 {v(red+4*n,4)}, {v(t0)}, {s(rWS,4)}, {s(sT0)} offen sc1")
            if n < 7: a(f"s_add_u32 {s(sT0)}, {s(sT0)}, {4*2560}")
        for n in range(1, 8):
            a(f"s_waitcnt vmcnt({7-n})")
            for k in range(4): a(f"v_add_f32 {v(red+k)}, {v(red+k)}, {v(red+4*n+k)}")
        a(f"s_lshl_b32 {s(sT0)}, {s(sW)}, 10\ns_add_u32 {s(sT0)}, {s(sT0)}, {RED_SCR - 2048}")
        a(f"v_add_u32 {v(t2)}, {s(sT0)}, {v(vL16)}")
        a(f"ds_write_b128 {v(t2)}, {v(red,4)}\ns_waitcnt lgkmcnt(0)")
        a(f"v_lshlrev_b32 {v(t1)}, 4, {v(t1)}\nv_add_u32 {v(t2)}, {s(sT0)}, {v(t1)}")
        for k in range(4): a(f"ds_read_b128 {v(red+4+4*k,4)}, {v(t2)} offset:{256*k}")
        a("s_waitcnt lgkmcnt(0)")
        for k in range(4):
            a(f"v_add_f32 {v(red+4+k)}, {v(red+4+k)}, {v(red+8+k)}\nv_add_f32 {v(red+12+k)}, {v(red+12+k)}, {v(red+16+k)}\nv_add_f32 {v(red+4+k)}, {v(red+4+k)}, {v(red+12+k)}")
        a(f"s_mul_i32 {s(sT0)}, {s(sT6)}, 2560\ns_lshl_b32 {s(sT1)}, {s(sT7)}, 8\ns_add_u32 {s(sT0)}, {s(sT0)}, {s(sT1)}\ns_add_u32 {s(sT0)}, {s(sT0)}, {WS_KVS}")
        a("s_mov_b64 exec, 0xffff")
        a(f"buffer_store_dwordx4 {v(red+4,4)}, {v(t1)}, {s(rWS,4)}, {s(sT0)} offen sc1")
        a("s_mov_b64 exec, -1")
        a("s_waitcnt vmcnt(0)")
        a(f"s_lshl_b32 {s(sT0)}, {s(sT6)}, 7\ns_lshl_b32 {s(sT1)}, {s(sT7)}, 2\ns_add_u32 {s(sT0)}, {s(sT0)}, {s(sT1)}\ns_add_u32 {s(sT0)}, {s(sT0)}, {WS_F2}")
        self.flag_store(sT0, t0, vZero)
        self.stamp(4, vStamp)
        a.label(lwo_done)
        a("s_waitcnt vmcnt(0)")
        a("s_barrier")
        a("s_barrier")
        self.stamp(5, vStamp)
        issued.clear()
        sBb, sBl, sAb, sAl = sT6, sT7, sT8, sT9
        a(f"s_lshr_b32 {s(sT1)}, {s(sW)}, 1\ns_and_b32 {s(sT2)}, {s(sW)}, 1\ns_lshl_b32 {s(sT3)}, {s(sT1)}, 5\ns_lshl_b32 {s(sT4)}, {s(sT2)}, 4\ns_add_u32 {s(sT3)}, {s(sT3)}, {s(sT4)}")
        a(f"s_mul_i32 {s(sBb)}, {s(sT3)}, 3072\ns_mul_i32 {s(sT3)}, {s(sJ)}, 384\ns_add_u32 {s(sBb)}, {s(sBb)}, {s(sT3)}")
        a(f"s_mul_i32 {s(sBl)}, {s(sT1)}, 12288\ns_mul_i32 {s(sT3)}, {s(sT2)}, 6144\ns_add_u32 {s(sBl)}, {s(sBl)}, {s(sT3)}\ns_add_u32 {s(sBl)}, {s(sBl)}, {RING4}")
        a(f"s_lshl_b32 {s(sT1)}, {s(sI)}, 2\ns_add_u32 {s(sT1)}, {s(sT1)}, {s(sW)}\ns_mul_i32 {s(sAb)}, {s(sT1)}, 20480\ns_add_u32 {s(sAb)}, {s(sAb)}, {WS_H}")
        a(f"s_lshl_b32 {s(sAl)}, {s(sW)}, 10\ns_add_u32 {s(sAl)}, {s(sAl)}, {A4}")
        def issue_b4(p):
            for q in range(2):
                for n in range(3): dma(rW1, vW1+n, (sBb, p*64*3072 + q*8*3072), (sBl, (p % 3)*24576 + q*3072 + n*1024), ("b", p))
        def issue_a4(p):
            for par in range(2): dma(rWS, vL16, (sAb, (2*p+par)*1024), (sAl, (2*p+par)*4096), ("a", p), flags="sc1 ")
        issue_b4(0); issue_b4(1)
        a(f"s_lshl_b32 {s(sT1)}, {s(sI)}, 7\ns_add_u32 {s(sT1)}, {s(sT1)}, {WS_F4}")
        self.poll(32, sT1, t0, vL4)
        self.stamp(6, vStamp)
        issued.clear()
        for p in range(10): issue_a4(p)
        for p in range(10):
            if p == 0:
                wait_for(("a", 0))
            else:
                cand = max(k for k, tg in enumerate(issued) if tg in (("a", p), ("b", p)))
                a(f"s_waitcnt vmcnt({len(issued) - 1 - cand})")
            a("s_barrier")
            if p + 2 < 10: issue_b4(p + 2)
        self.stamp(7, vStamp)
        a("s_barrier")
        issued.clear()
        a(f"s_mul_i32 {s(sT6)}, {s(sW)}, {32*1280}\ns_mul_i32 {s(sT1)}, {s(sJ)}, 160\ns_add_u32 {s(sT6)}, {s(sT6)}, {s(sT1)}")
        a(f"s_mul_i32 {s(sT7)}, {s(sW)}, 5120\ns_add_u32 {s(sT7)}, {s(sT7)}, {RING5}")
        def issue_b5(g):
            for n in range(5): dma(rW2, vWn+n, (sT6, g*128*1280), (sT7, (g % 7)*20480 + n*1024), g)
        for g in range(6): issue_b5(g)
        for g in range(12):
            wait_for(g)
            a("s_barrier")
            if g + 6 < 12: issue_b5(g + 6)
        self.stamp(8, vStamp)
        self.stamp_flush(vStamp, t0)
        a("s_endpgm")
        self.vmax_loader = R.hi

    def build(self):
        a = self.a
        self.prologue()
        self.compute()
        self.loader()
        a.label("L_exit")
        a("s_endpgm")
        hdr = open(os.path.join(os.path.dirname(__file__), "header.txt")).read()
        body = a.text()
        txt = hdr + f"; @launch grid=(256,1,1) block=(512,1,1) lds={LDS_TOTAL}\n"
        txt += '.amdgcn_target "amdgcn-amd-amdhsa--gfx950"\n.text\n'
        txt += f".globl {KNAME}\n.p2align 8\n.type {KNAME},@function\n{KNAME}:\n" + body
        txt += f""".section .rodata,"a"
.p2align 6
.amdhsa_kernel {KNAME}
  .amdhsa_next_free_vgpr 256
  .amdhsa_next_free_sgpr 102
  .amdhsa_accum_offset 256
  .amdhsa_group_segment_fixed_size 0
  .amdhsa_kernarg_size 88
  .amdhsa_user_sgpr_count 2
  .amdhsa_user_sgpr_kernarg_segment_ptr 1
  .amdhsa_system_sgpr_workgroup_id_x 1
.end_amdhsa_kernel
"""
        return txt

if __name__ == "__main__":
    stamps = "--stamps" in sys.argv
    out = [x for x in sys.argv[1:] if not x.startswith("--")]
    g = Gen(stamps=stamps)
    txt = g.build()
    probs = check_hazards(g.a.lines)
    print(f"vgpr compute {g.vmax_compute} loader {g.vmax_loader}; lines {len(g.a.lines)}; hazards {len(probs)}")
    path = out[0] if out else f"cdna_kernels/{NAME}.s"
    open(path, "w").write(txt)
```
